```python
import torch

def _softmax(x, axis=-1):
    return torch.softmax(x, dim=axis)
def _gelu(x):
    return torch.nn.functional.gelu(x, approximate="tanh")
def _silu(x):
    return torch.nn.functional.silu(x)
def _sigmoid(x):
    return torch.sigmoid(x)
def _layernorm(x, axis=-1, eps=1e-5):
    m = x.mean(dim=axis, keepdim=True)
    v = x.var(dim=axis, keepdim=True, unbiased=False)
    return (x - m) / torch.sqrt(v + eps)
def _scatter_add(tgt, idx, src, axis=0):
    return tgt.clone().index_add_(axis, idx, src)
def _segment_sum(src, seg, n):
    out = torch.zeros((n,) + src.shape[1:], dtype=src.dtype)
    return out.index_add_(0, seg, src)
def _pad(x, pw):
    flat = tuple(v for pair in reversed(pw) for v in pair)
    return torch.nn.functional.pad(x, flat)

kernel_name = 'parallel_sum__spectral_gfnet__glu_gated_geglu__prompt'

def setup_inputs():

    _w = (lambda a: (lambda t: t.to(torch.bfloat16) if t.is_floating_point() else t)(torch.as_tensor(a)))
    def _A_setup():
        B, S, D = 1, 2048, 1024
        Df = D // 2 + 1
        return {
            "x": _w((lambda *s: torch.randn(*s, dtype=torch.bfloat16) * 0.05)(B, S, D)),
            "w_r": _w((lambda *s: torch.randn(*s, dtype=torch.bfloat16) * 0.8)(S, Df) * 0.02),
            "w_i": _w((lambda *s: torch.randn(*s, dtype=torch.bfloat16) * 0.8)(S, Df) * 0.02),
        }
    _A_in = _A_setup()

    def _B_setup():
        B, S, Dm, Df = 1, 2048, 1024, 3584
        return {
            "x": _w((lambda *s: torch.randn(*s, dtype=torch.bfloat16) * 0.05)(B, S, Dm)),
            "w_gate": _w((lambda *s: torch.randn(*s, dtype=torch.bfloat16) * 0.4)(Dm, Df) * (Dm ** -0.5)),
            "w_up": _w((lambda *s: torch.randn(*s, dtype=torch.bfloat16) * 0.4)(Dm, Df) * (Dm ** -0.5)),
            "w_down": _w((lambda *s: torch.randn(*s, dtype=torch.bfloat16) * 0.4)(Df, Dm) * (Df ** -0.5)),
        }
    _B_in = _B_setup()

    return {
        "A_x": _A_in["x"],
        "A_w_r": _A_in["w_r"],
        "A_w_i": _A_in["w_i"],
        "B_x": _B_in["x"],
        "B_w_gate": _B_in["w_gate"],
        "B_w_up": _B_in["w_up"],
        "B_w_down": _B_in["w_down"],
    }

def reference(A_x, A_w_r, A_w_i, B_x, B_w_gate, B_w_up, B_w_down):
    def _A_ref(x, w_r, w_i):
        B, S, D = x.shape
        X = (lambda x, axes=(-2,-1): torch.fft.rfft2(x.float(), dim=axes))(x, axes=(-2, -1))
        W = w_r + 1j * w_i
        X = X * W
        y = (lambda x, s, axes=(-2,-1): torch.fft.irfft2(x, s=s, dim=axes).to(torch.bfloat16))(X, (S, D), axes=(-2, -1))
        return y

    def _B_ref(x, w_gate, w_up, w_down):
        g = torch.einsum("bsd,df->bsf", x, w_gate)
        u = torch.einsum("bsd,df->bsf", x, w_up)
        h = _gelu(g) * u
        return torch.einsum("bsf,fd->bsd", h, w_down)

    x = A_x
    xn = _layernorm(x, axis=-1)
    return x + _A_ref(xn, A_w_r, A_w_i) + _B_ref(xn, B_w_gate, B_w_up, B_w_down)
```

```python
import struct

class K:
    def __init__(self, name):
        self.name = name
        self.lines = []
        self.lab = 0
    def __call__(self, s):
        for l in s.split("\n"):
            l = l.strip()
            if l:
                self.lines.append("    " + l if not l.endswith(":") else l)
    def c(self, s):
        self.lines.append("    ; " + s)
    def label(self, base):
        self.lab += 1
        return f"L_{self.name}_{base}_{self.lab}"
    def text(self, vgpr, accum, sgpr=96):
        body = "\n".join(self.lines)
        return f""".globl {self.name}
.p2align 8
.type {self.name},@function
{self.name}:
{body}
    s_endpgm
"""
    def desc(self, vgpr, accum, sgpr=96):
        return f""".p2align 6
.amdhsa_kernel {self.name}
  .amdhsa_next_free_vgpr {vgpr}
  .amdhsa_next_free_sgpr {sgpr}
  .amdhsa_accum_offset {accum}
  .amdhsa_group_segment_fixed_size 0
  .amdhsa_kernarg_size 80
  .amdhsa_user_sgpr_count 2
  .amdhsa_user_sgpr_kernarg_segment_ptr 1
  .amdhsa_system_sgpr_workgroup_id_x 1
  .amdhsa_float_denorm_mode_32 3
.end_amdhsa_kernel
"""

def f32bits(x):
    return struct.unpack("<I", struct.pack("<f", x))[0]
def fh(x):
    return "0x%08x" % f32bits(x)

def vr(b, n=1):
    return f"v{b}" if n == 1 else f"v[{b}:{b+n-1}]"
def ar(b, n=1):
    return f"a{b}" if n == 1 else f"a[{b}:{b+n-1}]"
def sr(b, n=1):
    return f"s{b}" if n == 1 else f"s[{b}:{b+n-1}]"

def srd(k, d, base_lo, off, nbytes):
    if off is None or off == 0:
        k(f"s_mov_b32 s{d}, s{base_lo}")
        k(f"s_mov_b32 s{d+1}, s{base_lo+1}")
    else:
        k(f"s_add_u32 s{d}, s{base_lo}, {off}")
        k(f"s_addc_u32 s{d+1}, s{base_lo+1}, 0")
    k(f"s_mov_b32 s{d+2}, {nbytes}")
    k(f"s_mov_b32 s{d+3}, 0x00020000")

def interleave(main, fill, per=None):
    out = []
    fi = 0
    for i, m in enumerate(main):
        out.append(m)
        n = per[i] if per is not None else -(-(len(fill) - fi) // (len(main) - i))
        for _ in range(n):
            if fi < len(fill):
                out.append(fill[fi]); fi += 1
    out.extend(fill[fi:])
    return out
```

```python
import math, struct
from asmlib import *

def bf16_val(x):
    u = f32bits(x)
    u = (u + 0x7FFF + ((u >> 16) & 1)) & 0xFFFF0000
    return struct.unpack("<f", struct.pack("<I", u))[0]

def gen_aux(k, C):
    MFMA = C.MFMA32
    ALPHA = C.ALPHA
    stamp, stamp_dump = C.stamp, C.stamp_dump
    L_CONST = 131072
    L_I1 = L_CONST + 18 * 1024
    L_W512 = L_I1 + 4 * 1024
    LDS = L_W512 + 8192
    TC, TS = 8, 24
    INA, INB, ACC, PK, CB, INC = 40, 72, 104, 168, 200, 224
    k("L_aux:")
    C.stamp_init(k)
    k(f"s_load_dwordx4 s[36:39], s[0:1], {C.KA_X}")
    k(f"s_load_dwordx2 s[40:41], s[0:1], {C.KA_WI}")
    k(f"s_load_dwordx4 s[44:47], s[0:1], {C.KA_DBG}")
    k("v_lshrrev_b32 v1, 6, v0")
    k("v_and_b32 v2, 63, v0")
    k("v_readfirstlane_b32 s20, v1")
    k("v_lshlrev_b32 v3, 4, v2")
    k("v_lshlrev_b32 v4, 5, v2")
    k("v_lshrrev_b32 v5, 2, v2")
    k("v_and_b32 v6, 3, v2")
    k("v_lshl_add_u32 v5, v6, 6, v5")
    k("v_mul_u32_u24 v5, 1026, v5")
    k("s_lshl_b32 s21, s2, 4")
    k("s_lshl_b32 s22, s20, 1")
    k("s_add_u32 s21, s21, s22")
    k("s_lshl_b32 s21, s21, 13")
    k("s_lshr_b32 s22, s20, 2")
    k("s_lshl_b32 s22, s22, 5")
    k("s_and_b32 s23, s20, 3")
    k("s_lshl_b32 s23, s23, 9")
    k("s_add_u32 s22, s22, s23")
    k("s_mul_i32 s22, s22, 1026")
    k("s_lshl_b32 s23, s2, 5")
    k("s_add_u32 s23, s22, s23")
    k("s_waitcnt lgkmcnt(0)")
    srd(k, 4, 46, C.WS_X1, C.S * C.D * 2)
    srd(k, 8, 38, 0, 2048 * 1026)
    srd(k, 12, 40, 0, 2048 * 1026)
    WL = ACC
    for j in range(4):
        k(f"s_add_u32 s24, s23, {(16*(j&1) + 256*(j>>1))*1026}")
        for hf in range(2):
            b = WL + 16 * j + 8 * hf
            k(f"buffer_load_dwordx4 v[{b}:{b+3}], v5, s[8:11], s24 offen offset:{16*hf}")
            k(f"buffer_load_dwordx4 v[{b+4}:{b+7}], v5, s[12:15], s24 offen offset:{16*hf}")
    for col, base in ((0, INA), (1, INB)):
        for blk in range(2):
            k(f"s_add_u32 s24, s21, {col*8192 + blk*4096}")
            for t in range(2):
                for part in range(2):
                    b = base + ((blk * 2 + t) * 2 + part) * 4
                    k(f"buffer_load_dwordx4 v[{b}:{b+3}], v4, s[4:7], s24 offen offset:{t*2048 + part*16}")
    k("s_cmp_lg_u32 s2, 0")
    k("s_cbranch_scc1 L_aux_no512a")
    for j in range(4):
        k(f"s_add_u32 s24, s22, {(16*(j&1) + 256*(j>>1))*1026}")
        k(f"buffer_load_ushort v{INC+2*j}, v5, s[8:11], s24 offen offset:1024")
        k(f"buffer_load_ushort v{INC+2*j+1}, v5, s[12:15], s24 offen offset:1024")
    k("L_aux_no512a:")
    T0 = PK
    k(f"v_lshrrev_b32 v{T0}, 5, v2")
    k(f"v_lshlrev_b32 v{T0}, 2, v{T0}")
    k("s_lshr_b32 s24, s20, 2")
    k("s_lshl_b32 s24, s24, 3")
    k("s_and_b32 s25, s20, 3")
    k("s_add_u32 s24, s24, s25")
    k(f"v_add_u32 v{T0+1}, s24, v{T0}")
    k(f"v_cvt_f32_u32 v{T0+1}, v{T0+1}")
    k(f"v_add_f32 v{T0+2}, 0x41800000, v{T0+1}")
    k(f"v_fma_f32 v{T0+3}, v{T0+1}, 2.0, 1.0")
    k(f"v_fma_f32 v{T0+4}, v{T0+2}, 2.0, 1.0")
    k(f"v_and_b32 v{T0+5}, 31, v2")
    k(f"v_cvt_f32_u32 v{T0+5}, v{T0+5}")
    k(f"v_mul_f32 v{T0+6}, {fh(1/32)}, v{T0+5}")
    k(f"v_add_f32 v{T0+7}, {fh(1/64)}, v{T0+6}")
    k(f"v_mul_f32 v{T0+8}, {fh(1/64)}, v{T0+5}")
    k("s_lshr_b32 s24, s20, 1")
    k(f"v_add_u32 v{T0+9}, s24, v{T0}")
    k(f"v_cvt_f32_u32 v{T0+9}, v{T0+9}")
    k(f"v_add_f32 v{T0+10}, 0x41000000, v{T0+9}")
    k("s_and_b32 s24, s20, 1")
    k(f"v_cvt_f32_u32 v{T0+11}, s24")
    k(f"v_mul_f32 v{T0+11}, {fh(0.25)}, v{T0+11}")
    k(f"v_add_f32 v{T0+12}, {fh(-0.25)}, v{T0+11}")
    k(f"v_mov_b32 v{T0+13}, 0")
    k(f"v_mov_b32 v{T0+14}, {fh(-0.25)}")
    k(f"v_mov_b32 v{T0+15}, {fh(0.25)}")
    k(f"s_mov_b32 s26, {fh(ALPHA)}")
    k("s_lshl_b32 s24, s20, 1")
    k(f"s_add_u32 s24, s24, {L_CONST}")
    k(f"v_add_u32 v6, s24, v3")
    spec = []
    for sg in range(3):
        for fn in range(3):
            for t in range(2):
                li = T0 + (6, 7, 8)[sg]
                kv = T0 + (1 + t if sg < 2 else 3 + t)
                spec.append((li, kv, T0 + 13 + fn))
    for o in range(2):
        for t in range(2):
            spec.append((T0 + 6, T0 + 9 + t, T0 + 11 + o))
    for g0 in range(0, 22, 8):
        grp = list(range(g0, min(22, g0 + 8)))
        R = CB
        for f in grp: k(f"v_fma_f32 v{R+f-g0}, v{spec[f][0]}, v{spec[f][1]}, v{spec[f][2]}")
        for f in grp: k(f"v_cos_f32 v{R+f-g0}, v{R+f-g0}")
        for f in grp: k(f"v_mul_f32 v{R+f-g0}, s26, v{R+f-g0}")
        for f in grp: k(f"v_cvt_pk_bf16_f32 v{R+f-g0}, v{R+f-g0}, v{R+f-g0}")
        for f in grp: k(f"ds_write_b16 v6, v{R+f-g0} offset:{f*1024}")
    def gen_tw(N, scale):
        k(f"v_and_b32 v6, 31, v2")
        k(f"v_cvt_f32_u32 v6, v6")
        k(f"v_mul_f32 v6, {fh(1/N)}, v6")
        k(f"v_lshrrev_b32 v7, 5, v2")
        k(f"v_lshlrev_b32 v7, 2, v7")
        k(f"v_cvt_f32_u32 v7, v7")
        k(f"v_mul_f32 v7, v6, v7")
        for i in range(16):
            c = 8 * (i >> 2) + (i & 3)
            k(f"v_mov_b32 v1, {fh(float(c))}")
            k(f"v_fma_f32 v{TS+i}, v6, v1, v7")
        for i in range(16): k(f"v_cos_f32 v{TC+i}, v{TS+i}")
        for i in range(16): k(f"v_sin_f32 v{TS+i}, v{TS+i}")
        if scale is not None:
            k(f"s_mov_b32 s27, {fh(scale)}")
            for i in range(32): k(f"v_mul_f32 v{TC+i}, s27, v{TC+i}")
    gen_tw(2048, None)
    k("s_mov_b32 s30, 0x05040100")
    k("s_mov_b32 s31, 0x07060302")
    k("v_lshlrev_b32 v6, 2, v2")
    k("s_lshl_b32 s24, s20, 10")
    k("v_add_u32 v6, s24, v6")
    k("v_add_u32 v7, 0x10000, v6")
    stamp(k, 1)
    k("s_waitcnt vmcnt(0)")
    stamp(k, 2)
    for j in range(4):
        for hf in range(2):
            b = WL + 16 * j + 8 * hf
            for i in range(4):
                for o in range(2):
                    tmp = PK + ((i * 2 + o) % 16) + 16 * hf
                    k(f"v_perm_b32 v{tmp}, v{b+4+i}, v{b+i}, s{30+o}")
                    k(f"ds_write_b32 v{6+hf}, v{tmp} offset:{(2*i+o)*8192 + j*256}")
    k("s_cmp_lg_u32 s2, 0")
    k("s_cbranch_scc1 L_aux_no512b")
    k(f"v_add_u32 v1, {L_W512}, v6")
    for j in range(4):
        k(f"v_perm_b32 v{PK+j}, v{INC+2*j+1}, v{INC+2*j}, s30")
        k(f"ds_write_b32 v1, v{PK+j} offset:{j*256}")
    k("L_aux_no512b:")
    k(f"v_add_u32 v5, {L_CONST}, v3")
    k("s_lshl_b32 s24, s20, 14")
    k("v_add_u32 v6, s24, v3")
    k("s_waitcnt lgkmcnt(0)")
    k("s_barrier")
    stamp(k, 3)
    k("s_or_b32 s28, s2, s20")

    state = {"buf": 0}
    def creads(sg, t, buf):
        return [f"ds_read_b128 v[{CB+12*buf+4*fn}:{CB+12*buf+4*fn+3}], v5 offset:{((sg*3+fn)*2+t)*1024}" for fn in range(3)]
    def cstage(sets, data, dataA, conj, nxt):
        units = [(h, t) for h in range(2) for t in range(2)]
        for ui, (h, t) in enumerate(units):
            buf = state["buf"]
            k("s_waitcnt lgkmcnt(0)")
            if ui + 1 < 4:
                n = (sets[units[ui + 1][0]], units[ui + 1][1])
            else:
                n = nxt
            if n is not None:
                for x in creads(n[0], n[1], 1 - buf): k(x)
            cos, sin, nsin = (CB + 12 * buf + 4 * fn for fn in range(3))
            if conj: sin, nsin = nsin, sin
            re, im = data(h, 0, t), data(h, 1, t)
            ar_, ai_ = ACC + (2 * h) * 16, ACC + (2 * h + 1) * 16
            def mm(acc, d, c, first):
                a, b = (d, c) if dataA else (c, d)
                src = "0" if first else f"v[{acc}:{acc+15}]"
                k(f"{MFMA} v[{acc}:{acc+15}], v[{a}:{a+3}], v[{b}:{b+3}], {src}")
            mm(ar_, re, cos, t == 0)
            mm(ai_, im, cos, t == 0)
            mm(ar_, im, sin, False)
            mm(ai_, re, nsin, False)
            state["buf"] = 1 - buf
    def pack(dst):
        for h in range(2):
            for part in range(2):
                for j in range(8):
                    t = j >> 2
                    d = dst + ((h * 2 + t) * 2 + part) * 4 + (j & 3)
                    s = ACC + (2 * h + part) * 16 + 2 * j
                    k(f"v_cvt_pk_bf16_f32 v{d}, v{s}, v{s+1}")
    def fr(base):
        return lambda h, part, t: base + ((h * 2 + t) * 2 + part) * 4
    def bfly_tw(conj):
        k("s_nop 11")
        for i in range(16):
            r0, i0, r1, i1 = ACC + i, ACC + 16 + i, ACC + 32 + i, ACC + 48 + i
            k(f"v_add_f32 v1, v{r0}, v{r1}")
            k(f"v_add_f32 v4, v{i0}, v{i1}")
            k(f"v_sub_f32 v7, v{r0}, v{r1}")
            k(f"v_sub_f32 v{i1}, v{i0}, v{i1}")
            sg, ng = ("-", "") if conj else ("", "-")
            k(f"v_mul_f32 v{r0}, v1, v{TC+i}")
            k(f"v_mul_f32 v{i0}, v4, v{TC+i}")
            k(f"v_mul_f32 v{r1}, v7, v{TC+i}")
            k(f"v_fma_f32 v{r0}, {sg}v4, v{TS+i}, v{r0}")
            k(f"v_fma_f32 v{i0}, {ng}v1, v{TS+i}, v{i0}")
            k(f"v_fma_f32 v{r1}, {sg}v{i1}, v{TS+i}, v{r1}")
            k(f"v_mul_f32 v{i1}, v{i1}, v{TC+i}")
            k(f"v_fma_f32 v{i1}, {ng}v7, v{TS+i}, v{i1}")
    def fwd(IN, wreg, woff):
        cstage((0, 2), fr(IN), True, False, (0, 0))
        bfly_tw(False)
        pack(PK)
        k("s_nop 0")
        cstage((0, 1), fr(PK), False, False, (0, 0))
        for eq in range(8):
            k(f"ds_read_b128 v[{PK+4*eq}:{PK+4*eq+3}], v{wreg} offset:{woff + eq*1024}")
        k("s_nop 3")
        k("s_waitcnt lgkmcnt(0)")
        for e in range(2):
            for i in range(16):
                w_ = PK + 16 * e + i
                r, im = ACC + 32 * e + i, ACC + 32 * e + 16 + i
                k(f"v_lshlrev_b32 v1, 16, v{w_}")
                k(f"v_and_b32 v4, 0xffff0000, v{w_}")
                k(f"v_mul_f32 v7, v{r}, v4")
                k(f"v_mul_f32 v{r}, v{r}, v1")
                k(f"v_fma_f32 v{r}, -v{im}, v4, v{r}")
                k(f"v_fma_f32 v{im}, v{im}, v1, v7")
        pack(IN)
    def inv(YF, wr):
        k("s_nop 0")
        cstage((0, 2), fr(YF), True, True, (0, 0))
        bfly_tw(True)
        pack(PK)
        k("s_nop 0")
        cstage((0, 1), fr(PK), False, True, (0, 0))
        k("s_nop 7")
        for blk in range(2):
            for i in range(16):
                q, r = i >> 2, i & 3
                wr(blk, i, ACC + 32 * blk + i, ACC + 32 * blk + 16 + i, f"v{6 + (q >> 1)}", ((8 * (q & 1) + r) * 4096 + blk * 2048))
    for x in creads(0, 0, 0): k(x)
    k("s_cmp_lg_u32 s28, 0")
    k("s_cbranch_scc1 L_aux_nsp1")
    for bt in range(4):
        for j in range(4):
            k(f"v_mov_b32 v{INC+bt*8+j}, v{INA+bt*8+4+j}")
            k(f"v_mov_b32 v{INC+bt*8+4+j}, 0")
            k(f"v_mov_b32 v{INA+bt*8+4+j}, 0")
    k(f"v_add_u32 v0, {L_W512}, v3")
    fwd(INC, 0, 0)
    k("L_aux_nsp1:")
    fwd(INA, 6, 0)
    fwd(INB, 6, 8192)
    k("v_and_b32 v6, 31, v2")
    k("v_bfe_u32 v7, v2, 1, 3")
    k("v_xor_b32 v7, s20, v7")
    k("v_lshlrev_b32 v7, 3, v7")
    k("v_lshl_add_u32 v6, v6, 6, v7")
    k("v_lshrrev_b32 v7, 5, v2")
    k("v_lshl_add_u32 v6, v7, 14, v6")
    k("v_add_u32 v0, 0x10000, v6")
    stamp(k, 4)
    k("s_barrier")
    def wr_full(col):
        def f(blk, i, re, im, base, off):
            base = "v0" if base == "v7" else base
            t = PK + (i + 16 * blk)
            k(f"v_cvt_pk_bf16_f32 v{t}, v{re}, v{im}")
            k(f"ds_write_b32 {base}, v{t} offset:{off + 4*col}")
        return f
    def wr_hi(blk, i, re, im, base, off):
        base = "v0" if base == "v7" else base
        t = PK + (i + 16 * blk)
        k(f"v_cvt_pk_bf16_f32 v{t}, v{re}, v{re}")
        k(f"ds_write_b16 {base}, v{t} offset:{off + 2}")
    inv(INA, wr_full(0))
    k("s_cmp_lg_u32 s28, 0")
    k("s_cbranch_scc1 L_aux_nsp2")
    inv(INC, wr_hi)
    k("L_aux_nsp2:")
    inv(INB, wr_full(1))
    k("s_waitcnt lgkmcnt(0)")
    k("s_barrier")
    stamp(k, 5)
    srd(k, 4, 46, C.WS_Z, C.S * C.D * 2)
    srd(k, 8, 36, 0, C.S * C.D * 2)
    srd(k, 12, 46, C.WS_Y, C.S * C.D * 2)
    srd(k, 16, 44, 0, 256)
    k("s_lshl_b32 s24, s20, 14")
    k("v_add_u32 v6, s24, v3")
    k("s_lshl_b32 s25, s2, 17")
    k("s_add_u32 s25, s25, s24")
    for i in range(16):
        k(f"ds_read_b128 v[{INA+4*i}:{INA+4*i+3}], v6 offset:{i*1024}")
    for i in range(16):
        if i % 4 == 0:
            k(f"s_add_u32 s24, s25, {i*1024}")
        k(f"s_waitcnt lgkmcnt({15-i})")
        k(f"buffer_store_dwordx4 v[{INA+4*i}:{INA+4*i+3}], v3, s[4:7], s24 offen offset:{(i%4)*1024} sc1")
    XIN, TT, PKI, CI = 104, 168, 200, 216
    k("s_lshl_b32 s21, s2, 6")
    k("s_lshl_b32 s22, s20, 3")
    k("s_add_u32 s21, s21, s22")
    k("s_lshl_b32 s22, s21, 11")
    k("v_and_b32 v4, 31, v2")
    k("v_lshlrev_b32 v4, 6, v4")
    k("v_lshrrev_b32 v5, 5, v2")
    k("v_lshl_add_u32 v4, v5, 3, v4")
    k("s_waitcnt vmcnt(0)")
    k("s_barrier")
    k("s_cmp_lg_u32 s20, 0")
    k("s_cbranch_scc1 L_aux_nosig")
    k("v_mov_b32 v6, 0")
    k("v_mov_b32 v7, 1")
    k("s_mov_b64 s[48:49], exec")
    k("s_mov_b64 exec, 1")
    k("buffer_atomic_add v7, v6, s[16:19], 0 offen")
    k("s_mov_b64 exec, s[48:49]")
    k("L_aux_nosig:")
    for n in range(8):
        k(f"s_add_u32 s24, s22, {n*2048}")
        for q in range(4):
            k(f"buffer_load_dwordx2 v[{XIN+8*n+2*q}:{XIN+8*n+2*q+1}], v4, s[8:11], s24 offen offset:{16*q}")
    gen_tw(1024, 2.0 / (C.S * C.D * ALPHA ** 8))
    k(f"v_add_u32 v5, {L_CONST}, v3")
    for f in range(4):
        k(f"ds_read_b128 v[{CI+4*f}:{CI+4*f+3}], v5 offset:{(18+f)*1024}")
    for f, src in enumerate((0, 1, 4, 5)):
        k(f"ds_read_b128 v[{CI+16+4*f}:{CI+16+4*f+3}], v5 offset:{src*1024}")
    k("v_bfe_u32 v6, v2, 4, 1")
    k("v_lshrrev_b32 v7, 5, v2")
    k("v_lshl_add_u32 v6, v7, 3, v6")
    k("v_lshlrev_b32 v6, 17, v6")
    k("v_and_b32 v7, 15, v2")
    k("v_lshl_add_u32 v6, v7, 2, v6")
    k("s_lshl_b32 s23, s20, 2")
    for m in range(4):
        k(f"s_add_u32 s24, s23, {m}")
        k("s_and_b32 s24, s24, 7")
        k("s_lshl_b32 s24, s24, 3")
        k(f"v_xor_b32 v{248+m}, s24, v6")
    k("s_lshl_b32 s23, s21, 6")
    for tr in range(8):
        k(f"s_add_u32 s{50+tr}, s23, {(8*(tr>>2) + (tr&3))*262144}")
    k("v_cmp_gt_u32 vcc, 32, v2")
    k(f"v_mov_b32 v6, {fh(-0.5*bf16_val(ALPHA))}")
    k("v_and_b32 v7, 1, v2")
    k("v_lshlrev_b32 v7, 31, v7")
    k(f"v_xor_b32 v7, {fh(0.5*ALPHA)}, v7")
    k("v_cndmask_b32 v252, 0, v6, vcc")
    k("v_cndmask_b32 v253, 0, v7, vcc")
    stamp(k, 6)
    k("s_cmp_lg_u32 s20, 0")
    k("s_cbranch_scc1 L_aux_nopoll")
    k("v_mov_b32 v6, 0")
    k("s_mov_b32 s25, 0")
    k("L_aux_poll:")
    k("buffer_load_dword v7, v6, s[16:19], 0 offen sc1")
    k("s_waitcnt vmcnt(0)")
    k("v_readfirstlane_b32 s24, v7")
    k("s_cmp_ge_u32 s24, 32")
    k("s_cbranch_scc1 L_aux_nopoll")
    k("s_sleep 4")
    k("s_add_u32 s25, s25, 1")
    k("s_cmp_lt_u32 s25, 0x100000")
    k("s_cbranch_scc1 L_aux_poll")
    k("L_aux_nopoll:")
    k("s_barrier")
    stamp(k, 7)
    ZIN = INA
    for n in range(8):
        for tr in range(8):
            k(f"buffer_load_dword v{ZIN+8*n+tr}, v{248+(n>>1)}, s[4:7], s{50+tr} offen offset:{n*64} sc1")
    k("s_waitcnt lgkmcnt(0)")
    for n in range(8):
        z = ZIN + 8 * n
        k(f"s_waitcnt vmcnt({min(63, 8*(7-n) + 4*n)})")
        k(f"{MFMA} v[{TT}:{TT+15}], v[{z}:{z+3}], v[{CI}:{CI+3}], 0")
        k(f"{MFMA} v[{TT+16}:{TT+31}], v[{z}:{z+3}], v[{CI+8}:{CI+11}], 0")
        k(f"{MFMA} v[{TT}:{TT+15}], v[{z+4}:{z+7}], v[{CI+4}:{CI+7}], v[{TT}:{TT+15}]")
        k(f"{MFMA} v[{TT+16}:{TT+31}], v[{z+4}:{z+7}], v[{CI+12}:{CI+15}], v[{TT+16}:{TT+31}]")
        k(f"v_readlane_b32 s24, v{z}, 0")
        k("s_nop 3")
        k("s_lshl_b32 s25, s24, 16")
        k("s_and_b32 s26, s24, 0xffff0000")
        k(f"s_add_u32 s24, s22, {n*2048}")
        k("s_nop 5")
        k(f"v_fma_f32 v{TT}, v252, s25, v{TT}")
        k(f"v_fma_f32 v{TT}, v253, s26, v{TT}")
        for i in range(16):
            k(f"v_mul_f32 v1, v{TT+i}, v{TS+i}")
            k(f"v_mul_f32 v{TT+i}, v{TT+i}, v{TC+i}")
            k(f"v_fma_f32 v{TT+i}, -v{TT+16+i}, v{TS+i}, v{TT+i}")
            k(f"v_fma_f32 v{TT+16+i}, v{TT+16+i}, v{TC+i}, v1")
        for j in range(16):
            k(f"v_cvt_pk_bf16_f32 v{PKI+j}, v{TT+2*j}, v{TT+2*j+1}")
        k("s_nop 1")
        k(f"{MFMA} v[{TT}:{TT+15}], v[{PKI}:{PKI+3}], v[{CI+16}:{CI+19}], 0")
        k(f"{MFMA} v[{TT}:{TT+15}], v[{PKI+4}:{PKI+7}], v[{CI+20}:{CI+23}], v[{TT}:{TT+15}]")
        k(f"{MFMA} v[{TT}:{TT+15}], v[{PKI+8}:{PKI+11}], v[{CI+24}:{CI+27}], v[{TT}:{TT+15}]")
        k(f"{MFMA} v[{TT}:{TT+15}], v[{PKI+12}:{PKI+15}], v[{CI+28}:{CI+31}], v[{TT}:{TT+15}]")
        k("s_nop 11")
        for j in range(8):
            x = XIN + 8 * n + j
            k(f"v_cvt_pk_bf16_f32 v1, v{TT+2*j}, v{TT+2*j+1}")
            k(f"v_lshlrev_b32 v5, 16, v{x}")
            k(f"v_and_b32 v6, 0xffff0000, v{x}")
            k(f"v_lshlrev_b32 v7, 16, v1")
            k(f"v_and_b32 v1, 0xffff0000, v1")
            k(f"v_add_f32 v5, v5, v7")
            k(f"v_add_f32 v6, v6, v1")
            k(f"v_cvt_pk_bf16_f32 v{x}, v5, v6")
        for q in range(4):
            k(f"buffer_store_dwordx2 v[{XIN+8*n+2*q}:{XIN+8*n+2*q+1}], v4, s[12:15], s24 offen offset:{16*q}")
    stamp(k, 8)
    stamp_dump(k, 9, 1)
    k("s_endpgm")
    return LDS
```

```python
import sys, math
from asmlib import *
import aux

NAME = "parallel_sum__spectral_gfnet__glu_gated_geglu__prompt"
KA_X, KA_WR, KA_WI, KA_BX, KA_WG, KA_WU, KA_WD, KA_OUT, KA_DBG, KA_WS = [8 * i for i in range(10)]
MB = 1 << 20
WS_XNF = 0
WS_HF = 4 * MB
WS_X1 = 20 * MB
WS_Z = 24 * MB
WS_Y = 28 * MB
S, D, F = 2048, 1024, 3584

DIAG = 0
def stamp(k, idx):
    if not DIAG: return
    k(f"s_memtime s[90:91]")
    k(f"s_memrealtime s[92:93]")
    k("s_waitcnt lgkmcnt(0)")
    k(f"s_mov_b32 s{60+idx}, s90")
    k(f"s_mov_b32 s{70+idx}, s92")
def stamp_init(k):
    stamp(k, 0)
def stamp_dump(k, n, region):
    if not DIAG: return
    k(f"s_load_dwordx2 s[84:85], s[0:1], {KA_WS}")
    k("s_waitcnt lgkmcnt(0)")
    k(f"s_add_u32 s84, s84, {64*MB + region*65536*4}")
    k("s_addc_u32 s85, s85, 0")
    k("s_mov_b32 s86, 0x40000")
    k("s_mov_b32 s87, 0x00020000")
    k("s_lshl_b32 s88, s2, 10")
    k("s_lshl_b32 s89, s20, 7")
    k("s_add_u32 s88, s88, s89")
    k("v_mov_b32 v1, 0")
    for i in range(n):
        k(f"v_mov_b32 v2, s{60+i}")
        k(f"buffer_store_dword v2, v1, s[84:87], s88 offen offset:{4*i}")
        k(f"v_mov_b32 v3, s{70+i}")
        k(f"buffer_store_dword v3, v1, s[84:87], s88 offen offset:{64+4*i}")
def wave_sum(k, v, tmp, s0):
    k("s_nop 1")
    k(f"v_add_f32_dpp v{v}, v{v}, v{v} quad_perm:[1,0,3,2] row_mask:0xf bank_mask:0xf")
    k("s_nop 1")
    k(f"v_add_f32_dpp v{v}, v{v}, v{v} quad_perm:[2,3,0,1] row_mask:0xf bank_mask:0xf")
    k("s_nop 1")
    k(f"v_add_f32_dpp v{v}, v{v}, v{v} row_half_mirror row_mask:0xf bank_mask:0xf")
    k("s_nop 1")
    k(f"v_add_f32_dpp v{v}, v{v}, v{v} row_mirror row_mask:0xf bank_mask:0xf")
    k("s_nop 1")
    for i in range(4):
        k(f"v_readlane_b32 s{s0+i}, v{v}, {16*i}")
    k("s_nop 1")
    k(f"v_mov_b32 v{v}, s{s0}")
    k(f"v_add_f32 v{v}, s{s0+1}, v{v}")
    k(f"v_mov_b32 v{tmp}, s{s0+2}")
    k(f"v_add_f32 v{tmp}, s{s0+3}, v{tmp}")
    k(f"v_add_f32 v{v}, v{v}, v{tmp}")

def bf16_round(k, v):
    k(f"v_cvt_pk_bf16_f32 v{v}, v{v}, v{v}")
    k(f"v_and_b32 v{v}, 0xffff0000, v{v}")

ALPHA = 1.6245
MFMA32 = "v_mfma_f32_32x32x16_bf16"

def gen_ln(MF1=32):
    k = K("ln_kernel")
    XP = 2080
    L_CONST = 8 * XP
    L_STG = L_CONST + 8192
    LDS = L_STG + 16384
    k("s_cmp_ge_u32 s2, 256")
    k("s_cbranch_scc1 L_ln_end")
    stamp_init(k)
    k(f"s_load_dwordx2 s[4:5], s[0:1], {KA_X}")
    k(f"s_load_dwordx2 s[6:7], s[0:1], {KA_WS}")
    k("v_lshrrev_b32 v1, 6, v0")
    k("v_and_b32 v2, 63, v0")
    k("v_readfirstlane_b32 s20, v1")
    k("s_lshr_b32 s21, s2, 7")
    k("s_lshl_b32 s21, s21, 4")
    k("s_lshr_b32 s22, s20, 2")
    k("s_lshl_b32 s22, s22, 3")
    k("s_and_b32 s23, s20, 3")
    k("s_add_u32 s22, s22, s23")
    k("s_add_u32 s21, s21, s22")
    k("s_bfe_u32 s23, s2, 0x10006")
    k("s_lshl_b32 s23, s23, 2")
    k("s_add_u32 s21, s21, s23")
    k("s_lshl_b32 s21, s21, 6")
    k("s_and_b32 s23, s2, 63")
    k("s_add_u32 s21, s21, s23")
    k("s_lshl_b32 s21, s21, 11")
    k("v_lshlrev_b32 v3, 4, v2")
    k("s_waitcnt lgkmcnt(0)")
    srd(k, 8, 4, 0, S * D * 2)
    k("buffer_load_dwordx4 v[4:7], v3, s[8:11], s21 offen")
    k("buffer_load_dwordx4 v[8:11], v3, s[8:11], s21 offen offset:1024")
    srd(k, 12, 6, WS_XNF, S * D * 2)
    srd(k, 16, 6, WS_X1, S * D * 2)
    k("v_lshrrev_b32 v40, 5, v2")
    k("v_lshlrev_b32 v41, 2, v40")
    k("v_add_u32 v42, s22, v41")
    k("v_cvt_f32_u32 v42, v42")
    k("v_add_f32 v43, 0x41800000, v42")
    k("v_and_b32 v44, 31, v2")
    k("v_cvt_f32_u32 v44, v44")
    k(f"v_mul_f32 v45, {fh(1/32)}, v44")
    k("v_and_b32 v46, 15, v2")
    k("v_cvt_f32_u32 v46, v46")
    k(f"v_mul_f32 v46, {fh(1/32)}, v46")
    k("v_bfe_u32 v47, v2, 4, 1")
    k("v_cvt_f32_u32 v47, v47")
    k(f"v_mul_f32 v47, {fh(0.25)}, v47")
    k(f"v_add_f32 v48, {fh(-0.25)}, v47")
    k(f"v_mov_b32 v49, {fh(0.25)}")
    k(f"s_mov_b32 s24, {fh(ALPHA)}")
    k("s_lshl_b32 s23, s20, 1")
    k(f"s_add_u32 s23, s23, {L_CONST}")
    k("v_add_u32 v50, s23, v3")
    spec = [(45, 42, None), (45, 43, None), (45, 42, 49), (45, 43, 49), (46, 42, 47), (46, 43, 47), (46, 42, 48), (46, 43, 48)]
    for f, (li, kv, ph) in enumerate(spec):
        k(f"v_mul_f32 v{52+f}, v{li}, v{kv}" if ph is None else f"v_fma_f32 v{52+f}, v{li}, v{kv}, v{ph}")
    for f in range(8): k(f"v_cos_f32 v{52+f}, v{52+f}")
    for f in range(8): k(f"v_mul_f32 v{52+f}, s24, v{52+f}")
    for f in range(8): k(f"v_cvt_pk_bf16_f32 v{52+f}, v{52+f}, v{52+f}")
    for f in range(8): k(f"ds_write_b16 v50, v{52+f} offset:{f*1024}")
    TC, TS = 64, 80
    k(f"v_mul_f32 v45, {fh(1/1024)}, v44")
    k("v_cvt_f32_u32 v41, v41")
    k("v_mul_f32 v46, v45, v41")
    for i in range(16):
        c = 8 * (i >> 2) + (i & 3)
        k(f"v_mov_b32 v47, {fh(float(c))}")
        k(f"v_fma_f32 v{TS+i}, v45, v47, v46")
    for i in range(16): k(f"v_cos_f32 v{TC+i}, v{TS+i}")
    for i in range(16): k(f"v_sin_f32 v{TS+i}, v{TS+i}")
    k(f"s_mul_i32 s25, s20, {XP}")
    k("v_add_u32 v51, s25, v3")
    k("v_lshlrev_b32 v60, 8, v40")
    k("v_bfe_u32 v61, v2, 2, 2")
    k("v_lshlrev_b32 v61, 6, v61")
    k("v_add_u32 v60, v60, v61")
    k("v_bfe_u32 v61, v2, 4, 1")
    k("v_lshlrev_b32 v61, 5, v61")
    k("v_add_u32 v60, v60, v61")
    k("v_and_b32 v61, 3, v2")
    k("v_lshlrev_b32 v61, 3, v61")
    k("v_add_u32 v60, v60, v61")
    k("v_add_u32 v60, s25, v60")
    k("s_waitcnt vmcnt(0)")
    stamp(k, 1)
    for i in range(8):
        k(f"v_lshlrev_b32 v{16+2*i}, 16, v{4+i}")
        k(f"v_and_b32 v{17+2*i}, 0xffff0000, v{4+i}")
    k("v_add_f32 v32, v16, v17")
    k("v_add_f32 v33, v18, v19")
    for i in range(2, 8):
        k(f"v_add_f32 v{32+(i&1)}, v{32+(i&1)}, v{16+2*i}")
        k(f"v_add_f32 v{32+(i&1)}, v{32+(i&1)}, v{17+2*i}")
    k("v_add_f32 v32, v32, v33")
    wave_sum(k, 32, 33, 26)
    k(f"v_mul_f32 v32, {fh(1.0/1024)}, v32")
    k("v_sub_f32 v34, v16, v32")
    k("v_mul_f32 v35, v34, v34")
    k("v_sub_f32 v34, v17, v32")
    k("v_mul_f32 v36, v34, v34")
    for i in range(2, 16):
        k(f"v_sub_f32 v34, v{16+i}, v32")
        k(f"v_fmac_f32 v{35+(i&1)}, v34, v34")
    k("v_add_f32 v35, v35, v36")
    wave_sum(k, 35, 33, 26)
    k(f"v_mul_f32 v35, {fh(1.0/1024)}, v35")
    bf16_round(k, 35)
    k(f"v_add_f32 v35, {fh(1e-5)}, v35")
    bf16_round(k, 35)
    k("v_sqrt_f32 v35, v35")
    k("s_nop 0")
    bf16_round(k, 35)
    k("v_rcp_f32 v35, v35")
    bf16_round(k, 32)
    for i in range(8):
        k(f"v_sub_f32 v{16+2*i}, v{16+2*i}, v32")
        k(f"v_sub_f32 v{17+2*i}, v{17+2*i}, v32")
        k(f"v_cvt_pk_bf16_f32 v34, v{16+2*i}, v{17+2*i}")
        k(f"v_lshlrev_b32 v{16+2*i}, 16, v34")
        k(f"v_and_b32 v{17+2*i}, 0xffff0000, v34")
        k(f"v_mul_f32 v{16+2*i}, v{16+2*i}, v35")
        k(f"v_mul_f32 v{17+2*i}, v{17+2*i}, v35")
        k(f"v_cvt_pk_bf16_f32 v{4+i}, v{16+2*i}, v{17+2*i}")
    k("ds_write_b128 v51, v[4:7]")
    k("ds_write_b128 v51, v[8:11] offset:1024")
    k("s_waitcnt lgkmcnt(0)")
    k("s_barrier")
    stamp(k, 2)
    for t in range(2):
        for u in range(2):
            k(f"ds_read_b64_tr_b16 v[{4+4*t+2*u}:{5+4*t+2*u}], v60 offset:{(16*t+8*u)*64}")
    k(f"v_add_u32 v61, {L_CONST}, v3")
    for f in range(8):
        k(f"ds_read_b128 v[{96+4*f}:{99+4*f}], v61 offset:{f*1024}")
    k("v_and_b32 v52, 7, v0")
    k(f"v_mul_u32_u24 v53, {XP}, v52")
    k("v_lshrrev_b32 v54, 3, v0")
    k("v_lshl_add_u32 v53, v54, 4, v53")
    k("ds_read_b128 v[12:15], v53")
    k("ds_read_b128 v[56:59], v53 offset:1024")
    k("s_lshr_b32 s22, s2, 5")
    k("s_lshl_b32 s22, s22, 19")
    if MF1 == 32:
        k("s_lshr_b32 s23, s2, 2")
        k("s_and_b32 s23, s23, 7")
        k("s_lshl_b32 s23, s23, 11")
        k("s_add_u32 s22, s22, s23")
        k("s_and_b32 s23, s2, 3")
    else:
        k("s_lshr_b32 s23, s2, 1")
        k("s_and_b32 s23, s23, 15")
        k("s_lshl_b32 s23, s23, 10")
        k("s_add_u32 s22, s22, s23")
        k("s_and_b32 s23, s2, 1")
    k("s_lshl_b32 s23, s23, 7")
    k("s_add_u32 s22, s22, s23")
    k("s_add_u32 s23, s22, 0x40000")
    k("v_lshrrev_b32 v55, 2, v54")
    k("v_lshlrev_b32 v55, 14, v55")
    k("v_and_b32 v54, 3, v54")
    k(f"v_lshlrev_b32 v54, {9 if MF1 == 32 else 8}, v54")
    k("v_add_u32 v55, v55, v54")
    k("v_lshl_add_u32 v55, v52, 4, v55")
    k("s_waitcnt lgkmcnt(6)")
    k(f"{MFMA32} v[16:31], v[4:7], v[96:99], 0")
    k(f"{MFMA32} v[32:47], v[4:7], v[104:107], 0")
    k(f"{MFMA32} v[16:31], v[8:11], v[100:103], v[16:31]")
    k(f"{MFMA32} v[32:47], v[8:11], v[108:111], v[32:47]")
    k("s_waitcnt lgkmcnt(0)")
    k("buffer_store_dwordx4 v[12:15], v55, s[12:15], s22 offen")
    k("buffer_store_dwordx4 v[56:59], v55, s[12:15], s23 offen")
    k("s_lshl_b32 s25, s20, 11")
    k(f"s_add_u32 s25, s25, {L_STG}")
    k("v_add_u32 v51, s25, v3")
    k("v_lshlrev_b32 v52, 2, v0")
    k(f"v_add_u32 v52, {L_STG}, v52")
    k("v_bfe_u32 v53, v0, 2, 5")
    k("v_lshrrev_b32 v54, 7, v0")
    k("v_lshlrev_b32 v54, 2, v54")
    k("v_and_b32 v62, 3, v0")
    k("v_add_u32 v54, v54, v62")
    k("v_lshl_add_u32 v53, v54, 5, v53")
    k("v_lshlrev_b32 v53, 13, v53")
    k("s_bfe_u32 s26, s2, 0x10005")
    k("s_lshl_b32 s26, s26, 12")
    k("s_lshr_b32 s27, s2, 6")
    k("s_lshl_b32 s27, s27, 10")
    k("s_add_u32 s26, s26, s27")
    k("s_and_b32 s27, s2, 31")
    k("s_lshl_b32 s27, s27, 5")
    k("s_add_u32 s26, s26, s27")
    k("v_cmp_eq_u32 vcc, 0, v2")
    k("v_sub_f32 v62, v16, v17")
    k("v_sub_f32 v63, v18, v19")
    for i in range(2, 8):
        k(f"v_add_f32 v{62+(i&1)}, v{62+(i&1)}, v{16+2*i}")
        k(f"v_sub_f32 v{62+(i&1)}, v{62+(i&1)}, v{17+2*i}")
    k("v_add_f32 v62, v62, v63")
    for i in range(16):
        k(f"v_mul_f32 v48, v{16+i}, v{TS+i}")
        k(f"v_mul_f32 v{16+i}, v{16+i}, v{TC+i}")
        k(f"v_fmac_f32 v{16+i}, v{32+i}, v{TS+i}")
        k(f"v_fma_f32 v{32+i}, v{32+i}, v{TC+i}, -v48")
    k("v_readlane_b32 s28, v62, 0")
    k("v_readlane_b32 s29, v62, 32")
    for j in range(8):
        k(f"v_cvt_pk_bf16_f32 v{4+j}, v{16+2*j}, v{17+2*j}")
    for j in range(8):
        k(f"v_cvt_pk_bf16_f32 v{64+j}, v{32+2*j}, v{33+2*j}")
    k("v_mov_b32 v62, s28")
    k("v_add_f32 v62, s29, v62")
    k(f"{MFMA32} v[16:31], v[112:115], v[4:7], 0")
    k(f"{MFMA32} v[16:31], v[116:119], v[8:11], v[16:31]")
    k(f"{MFMA32} v[16:31], v[120:123], v[64:67], v[16:31]")
    k(f"{MFMA32} v[16:31], v[124:127], v[68:71], v[16:31]")
    k("v_mul_f32 v62, s24, v62")
    k("s_mov_b32 s30, 0x05040100")
    k("s_mov_b32 s31, 0x07060302")
    k("s_nop 9")
    k("v_cndmask_b32 v24, v24, v62, vcc")
    for j in range(8):
        k(f"v_cvt_pk_bf16_f32 v{32+j}, v{16+j}, v{24+j}")
    k("ds_write_b128 v51, v[32:35]")
    k("ds_write_b128 v51, v[36:39] offset:1024")
    k("s_waitcnt lgkmcnt(0)")
    k("s_barrier")
    stamp(k, 3)
    for j in range(4):
        k(f"ds_read2st64_b32 v[{16+2*j}:{17+2*j}], v52 offset0:{16*j} offset1:{16*j+8}")
    k("s_waitcnt lgkmcnt(0)")
    for j in range(4):
        k(f"v_perm_b32 v{32+j}, v{17+2*j}, v{16+2*j}, s30")
        k(f"v_perm_b32 v{36+j}, v{17+2*j}, v{16+2*j}, s31")
    k("buffer_store_dwordx4 v[32:35], v53, s[16:19], s26 offen")
    k("buffer_store_dwordx4 v[36:39], v53, s[16:19], s26 offen offset:16")
    stamp(k, 4)
    if DIAG: k("s_waitcnt vmcnt(0)")
    stamp(k, 5)
    stamp_dump(k, 6, 0)
    k("L_ln_end:")
    return k, 128, 128, LDS

def gen_gemm1(NS=4, MF=32, NW=8):
    k = K("gemm1_kernel")
    SLOT = 32768
    NSEG = 8 // NW
    NB = 8 // NW
    k("s_cmp_ge_u32 s2, 256")
    k("s_cbranch_scc1 L_g1_end")
    k("s_cmp_lt_u32 s2, 32")
    k("s_cbranch_scc1 L_aux")
    stamp_init(k)
    k(f"s_load_dwordx4 s[36:39], s[0:1], {KA_WG}")
    k(f"s_load_dwordx2 s[40:41], s[0:1], {KA_WS}")
    k("v_lshrrev_b32 v1, 6, v0")
    k("v_and_b32 v2, 63, v0")
    k("v_readfirstlane_b32 s20, v1")
    k("s_and_b32 s21, s2, 7")
    k("s_lshr_b32 s22, s2, 3")
    k("s_sub_u32 s22, s22, 4")
    k("s_and_b32 s23, s21, 1")
    k("s_lshl_b32 s23, s23, 2")
    k("s_and_b32 s24, s22, 3")
    k("s_add_u32 s23, s23, s24")
    k("s_lshr_b32 s24, s21, 1")
    k("s_mul_i32 s24, s24, 7")
    k("s_lshr_b32 s25, s22, 2")
    k("s_add_u32 s24, s24, s25")
    k("v_lshlrev_b32 v3, 4, v2")
    k(f"s_mul_i32 s26, s20, {NB*2048}")
    k("v_add_u32 v4, s26, v3")
    k("v_lshrrev_b32 v5, 4, v2")
    k(f"s_mul_i32 s26, s20, {NB*4}")
    k("v_add_u32 v6, s26, v5")
    k("v_bfe_u32 v9, v6, 3, 1")
    k("v_lshlrev_b32 v9, 1, v9")
    k("v_mul_u32_u24 v6, 7168, v6")
    k("v_lshlrev_b32 v7, 2, v5")
    k("v_and_b32 v8, 15, v2")
    k("v_xor_b32 v7, v7, v8")
    k("v_xor_b32 v7, v7, v9")
    k("v_lshlrev_b32 v7, 4, v7")
    k("v_add_u32 v5, v6, v7")
    if NB == 2:
        k("v_add_u32 v12, 2048, v4")
        k(f"v_add_u32 v13, {4*7168}, v5")
    k("s_and_b32 s26, s20, 1")
    k("s_lshl_b32 s26, s26, 14")
    k("v_add_u32 v6, s26, v3")
    k("s_lshr_b32 s27, s20, 1")
    k(f"s_mul_i32 s27, s27, {NSEG}")
    k("v_bfe_u32 v9, v2, 2, 2")
    k("v_lshlrev_b32 v10, 8, v9")
    k("v_and_b32 v8, 3, v2")
    k("v_lshlrev_b32 v8, 3, v8")
    k("v_add_u32 v8, v8, v10")
    if MF == 32:
        k("v_lshrrev_b32 v10, 5, v2")
        k("v_lshlrev_b32 v11, 13, v10")
        k("v_add_u32 v8, v8, v11")
        k("v_bfe_u32 v11, v2, 4, 1")
        k("v_xor_b32 v11, v11, v10")
        k("v_lshlrev_b32 v11, 5, v11")
        k("v_add_u32 v8, v8, v11")
    else:
        k("v_lshrrev_b32 v10, 4, v2")
        k("v_lshlrev_b32 v11, 13, v10")
        k("v_add_u32 v8, v8, v11")
        k("v_and_b32 v11, 1, v10")
        k("v_lshlrev_b32 v11, 5, v11")
        k("v_add_u32 v8, v8, v11")
    k("v_add_u32 v8, 2048, v8")
    k("v_xor_b32 v10, s27, v9")
    k("v_lshlrev_b32 v10, 6, v10")
    k("v_add_u32 v7, v8, v10")
    k("s_waitcnt lgkmcnt(0)")
    k("s_lshl_b32 s25, s23, 19")
    k(f"s_add_u32 s25, s25, {WS_XNF}")
    srd(k, 4, 40, "s25", 524288)
    k("s_lshl_b32 s25, s24, 8")
    for (d, b, adj) in ((8, 36, 2048), (12, 38, 3072)):
        k(f"s_add_u32 s{d}, s{b}, s25")
        k(f"s_addc_u32 s{d+1}, s{b+1}, 0")
        k(f"s_sub_u32 s{d}, s{d}, {adj}")
        k(f"s_subb_u32 s{d+1}, s{d+1}, 0")
        k(f"s_sub_u32 s{d+2}, {D*F*2 + adj}, s25")
        k(f"s_mov_b32 s{d+3}, 0x00020000")
    srd(k, 16, 40, WS_HF, S * F * 2)
    k(f"s_mul_i32 s28, s20, {NB*4096}")
    k("s_mov_b32 s29, 0")
    k("s_mov_b32 s30, 0")
    def dma(m0src):
        r = []
        for j in range(NB):
            vx, vw = (4, 5) if j == 0 else (12, 13)
            r += [f"s_add_u32 m0, {m0src}, {j*4096}",
                  f"buffer_load_dwordx4 v{vx}, s[4:7], s29 offen lds",
                  f"buffer_load_dwordx4 v{vx}, s[4:7], s29 offen offset:1024 lds",
                  f"buffer_load_dwordx4 v{vw}, s[8:11], s30 offen offset:2048 lds",
                  f"buffer_load_dwordx4 v{vw}, s[12:15], s30 offen offset:3072 lds"]
        r += ["s_add_u32 s29, s29, 16384", f"s_add_u32 s30, s30, {32*7168}"]
        return r
    for j in range(NS):
        k(f"s_add_u32 s31, s28, {j*SLOT}")
        for x in dma("s31"):
            k(x)
            if "m0" in x: k("s_nop 0")
    NWB = NSEG * (2 if MF == 16 else 1)
    VX = 16; VW = 17
    BW = 24
    for i in range(NWB):
        seg, fb = (i >> 1, i & 1) if MF == 16 else (i, 0)
        x = seg * 64 + fb * 32
        k(f"v_xor_b32 v{BW+i}, {x}, v7" if x else f"v_mov_b32 v{BW+i}, v7")
    NA = NWB * 2
    NBF = 4 if MF == 32 else 8
    SETSZ = 4 * (NA + NBF)
    SET = [32, 32 + SETSZ]
    useA = (NW == 4)
    ACC = 128
    NACC = 128 * NSEG
    CS = 16 if MF == 32 else 4
    def acc(i, n):
        return ar(i, n) if useA else vr(ACC + i, n)
    assert useA or 32 + 2 * SETSZ <= ACC
    for i in range(NACC):
        k(f"v_accvgpr_write_b32 a{i}, 0" if useA else f"v_mov_b32 v{ACC+i}, 0")
    def aidx(wi, mat): return wi * 2 + mat
    def reads(st, t):
        b = SET[st]
        A = []
        for wi in range(NWB):
            for mat in range(2):
                rb = b + 4 * aidx(wi, mat)
                o = t * 16384 + mat * 1024
                A.append([f"ds_read_b64_tr_b16 v[{rb}:{rb+1}], v{VW+wi} offset:{o}",
                          f"ds_read_b64_tr_b16 v[{rb+2}:{rb+3}], v{VW+wi} offset:{o+4096}"])
        B = []
        for sb in range(NBF):
            rb = b + 4 * NA + 4 * sb
            o = sb * 4096 + t * 1024 if MF == 32 else (sb >> 1) * 4096 + (sb & 1) * 1024
            B.append(f"ds_read_b128 v[{rb}:{rb+3}], v{VX} offset:{o}")
        r = A[0] + [B[0]]
        for a in A[1:]: r += a
        r += B[1:]
        return r
    def cidx(sb, wi, mat):
        return ((sb * NWB + wi) * 2 + mat) * CS
    def mfmas(st):
        b = SET[st]
        r = []
        op = "v_mfma_f32_32x32x16_bf16" if MF == 32 else "v_mfma_f32_16x16x32_bf16"
        for sb in range(NBF):
            for wi in range(NWB):
                for mat in range(2):
                    c = cidx(sb, wi, mat)
                    a = b + 4 * aidx(wi, mat)
                    bb = b + 4 * NA + 4 * sb
                    r.append(f"{op} {acc(c, CS)}, v[{a}:{a+3}], v[{bb}:{bb+3}], {acc(c, CS)}")
        return r
    def setaddr(sreg):
        return [f"v_add_u32 v{VX}, {sreg}, v6"] + [f"v_add_u32 v{VW+i}, {sreg}, v{BW+i}" for i in range(NWB)]
    def spread(mf, fill, frac):
        n = max(1, int(len(mf) * frac))
        per = [0] * len(mf)
        for i in range(len(fill)):
            per[i * n // len(fill)] += 1
        return interleave(mf, fill, per)
    ND = 4 * NB
    k(f"s_waitcnt vmcnt({ND*(NS-1)})")
    k("s_barrier")
    stamp(k, 1)
    for x in setaddr("0"): k(x)
    for x in reads(0, 0): k(x)
    k("s_mov_b32 s32, 0")
    k("s_mov_b32 s33, 0")
    adv = ["s_add_u32 s31, s28, s32",
           f"s_add_u32 s32, s32, {SLOT}",
           f"s_cmp_ge_u32 s32, {NS*SLOT}",
           "s_cselect_b32 s32, 0, s32"] + setaddr("s32")
    def merge(rd, d):
        out = []; di = 0
        step = max(1, len(rd) // max(1, len(d)))
        out.append(d[0]); di = 1
        for i, x in enumerate(rd):
            out.append(x)
            if i >= 2 and di < len(d) and (i % step == 0 or len(rd) <= len(d)):
                out.append(d[di]); di += 1
                if di < len(d) and "m0" in d[di]:
                    out.append(d[di]); di += 1; out.append("s_nop 0")
        rest = d[di:]
        for x in rest:
            out.append(x)
            if "m0" in x: out.append("s_nop 0")
        return out
    k("L_g1_loop:")
    if MF == 32:
        k("s_waitcnt lgkmcnt(0)")
        for x in spread(mfmas(0), reads(1, 1) + adv, 0.85): k(x)
        k(f"s_waitcnt vmcnt({ND*(NS-2)}) lgkmcnt(0)")
        k("s_barrier")
        fill = merge(reads(0, 0), dma("s31")) + ["s_add_u32 s33, s33, 1", "s_cmp_lt_u32 s33, 32"]
        for x in spread(mfmas(1), fill, 0.85): k(x)
    else:
        for half in range(2):
            for x in adv: k(x)
            k(f"s_waitcnt vmcnt({ND*(NS-2)}) lgkmcnt(0)")
            k("s_barrier")
            fill = merge(reads(1 - half, 0), dma("s31"))
            if half: fill += ["s_add_u32 s33, s33, 2", "s_cmp_lt_u32 s33, 32"]
            for x in spread(mfmas(half), fill, 0.8): k(x)
    k("s_cbranch_scc1 L_g1_loop")
    stamp(k, 2)
    k("s_nop 15")
    C1 = -2.0 * math.sqrt(2.0 / math.pi) * math.log2(math.e)
    C2 = C1 * 0.044715
    k(f"s_mov_b32 s34, {fh(C1)}")
    k(f"s_mov_b32 s35, {fh(C2)}")
    k("v_mov_b32 v12, s34")
    k("s_lshl_b32 s26, s23, 1")
    k("s_and_b32 s27, s20, 1")
    k("s_add_u32 s26, s26, s27")
    k("s_mul_i32 s26, s26, 224")
    k("s_lshl_b32 s27, s24, 3")
    k("s_add_u32 s26, s26, s27")
    k("s_lshr_b32 s27, s20, 1")
    k(f"s_mul_i32 s27, s27, {2*NSEG}")
    k("s_add_u32 s26, s26, s27")
    k("s_lshl_b32 s26, s26, 12")
    for i in range(1, 2 * NSEG):
        k(f"s_add_u32 s{44+i}, s26, {4096*i}")
    k("s_mov_b32 s44, s26")
    if MF == 16:
        k("v_and_b32 v13, 15, v2")
        k("v_bfe_u32 v14, v2, 4, 1")
        k("v_lshlrev_b32 v14, 5, v14")
        k("v_add_u32 v13, v13, v14")
        k("v_lshlrev_b32 v13, 4, v13")
        k("v_lshrrev_b32 v14, 5, v2")
        k("v_lshlrev_b32 v14, 12, v14")
        k("v_add_u32 v13, v13, v14")
    groups = []
    if MF == 32:
        for sb in range(4):
            for seg in range(NSEG):
                for grp in range(2):
                    gi = [cidx(sb, seg, 0) + 8 * grp + i for i in range(8)]
                    ui = [cidx(sb, seg, 1) + 8 * grp + i for i in range(8)]
                    groups.append((gi, ui, f"v3, s[16:19], s{44+2*seg+grp} offen offset:{sb*1024}"))
    else:
        for sb in range(8):
            for seg in range(NSEG):
                gi = [cidx(sb, 2 * seg + fb, 0) + r for fb in range(2) for r in range(4)]
                ui = [cidx(sb, 2 * seg + fb, 1) + r for fb in range(2) for r in range(4)]
                groups.append((gi, ui, f"v13, s[16:19], s{44+2*seg} offen offset:{(sb>>1)*1024+(sb&1)*256}"))
    for n, (gi, ui, addr) in enumerate(groups):
        T = 32 + (n % 3) * 28
        G = T + 8; U = T + 16; P = T + 24
        if useA:
            for i in range(8): k(f"v_accvgpr_read_b32 v{G+i}, a{gi[i]}")
            for i in range(8): k(f"v_accvgpr_read_b32 v{U+i}, a{ui[i]}")
            g = [G + i for i in range(8)]; u = [U + i for i in range(8)]
        else:
            g = [ACC + x for x in gi]; u = [ACC + x for x in ui]
        R = range(8)
        for i in R: k(f"v_mul_f32 v{T+i}, v{g[i]}, v{g[i]}")
        for i in R: k(f"v_fma_f32 v{T+i}, v{T+i}, s35, v12")
        for i in R: k(f"v_mul_f32 v{T+i}, v{T+i}, v{g[i]}")
        for i in R: k(f"v_exp_f32 v{T+i}, v{T+i}")
        for i in R: k(f"v_mul_f32 v{u[i]}, v{u[i]}, v{g[i]}")
        for i in R: k(f"v_add_f32 v{T+i}, 1.0, v{T+i}")
        for i in R: k(f"v_rcp_f32 v{T+i}, v{T+i}")
        k("s_nop 0")
        for i in R: k(f"v_mul_f32 v{T+i}, v{T+i}, v{u[i]}")
        for j in range(4):
            k(f"v_cvt_pk_bf16_f32 v{P+j}, v{T+2*j}, v{T+2*j+1}")
        k(f"buffer_store_dwordx4 v[{P}:{P+3}], {addr}")
    stamp(k, 3)
    if DIAG: k("s_waitcnt vmcnt(0)")
    stamp(k, 4)
    stamp_dump(k, 5, 1)
    k("s_endpgm")
    auxlds = aux.gen_aux(k, sys.modules[__name__])
    k("L_g1_end:")
    assert not useA
    return k, 256, 256, max(NS * SLOT, auxlds)

def gen_gemm2(DP=8, MF1=32):
    k = K("gemm2_kernel")
    k("s_cmp_ge_u32 s2, 256")
    k("s_cbranch_scc1 L_g2_end")
    stamp_init(k)
    k(f"s_load_dwordx4 s[36:39], s[0:1], {KA_WD}")
    k(f"s_load_dwordx2 s[40:41], s[0:1], {KA_WS}")
    k(f"s_load_dwordx2 s[42:43], s[0:1], {KA_X}")
    k("v_lshrrev_b32 v1, 6, v0")
    k("v_and_b32 v2, 63, v0")
    k("v_readfirstlane_b32 s20, v1")
    k("s_and_b32 s21, s2, 7")
    k("s_lshr_b32 s22, s2, 3")
    k("s_lshr_b32 s23, s21, 1")
    k("s_lshl_b32 s23, s23, 2")
    k("s_and_b32 s24, s22, 3")
    k("s_add_u32 s23, s23, s24")
    k("s_and_b32 s24, s21, 1")
    k("s_lshl_b32 s24, s24, 3")
    k("s_lshr_b32 s25, s22, 2")
    k("s_add_u32 s24, s24, s25")
    k("s_waitcnt lgkmcnt(0)")
    k(f"s_mul_i32 s25, s23, {224*4096}")
    k(f"s_add_u32 s25, s25, {WS_HF}")
    srd(k, 4, 40, "s25", 224 * 4096)
    k("s_lshl_b32 s25, s24, 7")
    k("s_add_u32 s8, s36, s25")
    k("s_addc_u32 s9, s37, 0")
    k(f"s_sub_u32 s10, {F*D*2}, s25")
    k("s_mov_b32 s11, 0x00020000")
    srd(k, 12, 40, WS_Y, S * D * 2)
    srd(k, 16, 38, 0, S * D * 2)
    k("v_lshlrev_b32 v3, 4, v2")
    k("v_lshrrev_b32 v4, 3, v2")
    k("v_lshlrev_b32 v4, 11, v4")
    k("v_bfe_u32 v5, v2, 4, 1")
    k("v_lshlrev_b32 v5, 2, v5")
    k("v_and_b32 v6, 7, v2")
    k("v_xor_b32 v5, v5, v6")
    k("v_lshlrev_b32 v5, 4, v5")
    k("v_add_u32 v4, v4, v5")
    k(f"v_add_u32 v5, {(16384 if MF1 == 32 else 32768)-1024}, v4")
    k(f"s_mul_i32 s28, s20, {DP*2048}")
    k("v_lshrrev_b32 v7, 5, v2")
    k("v_lshlrev_b32 v7, 9, v7")
    k("v_bfe_u32 v8, v2, 2, 2")
    k("v_lshlrev_b32 v9, 7, v8")
    k("v_add_u32 v7, v7, v9")
    k("v_lshrrev_b32 v8, 1, v8")
    k("v_lshlrev_b32 v8, 6, v8")
    k("v_bfe_u32 v9, v2, 4, 1")
    k("v_lshlrev_b32 v9, 5, v9")
    k("v_add_u32 v7, v7, v9")
    k("v_and_b32 v9, 3, v2")
    k("v_lshlrev_b32 v9, 3, v9")
    k("v_add_u32 v7, v7, v9")
    k("v_add_u32 v7, s28, v7")
    k("v_add_u32 v6, v7, v8")
    k("v_xor_b32 v8, 64, v8")
    k("v_add_u32 v7, v7, v8")
    k("s_lshl_b32 s29, s20, 12")
    if MF1 == 32:
        k("s_lshl_b32 s30, s20, 15")
    else:
        k("s_lshr_b32 s30, s20, 1")
        k("s_lshl_b32 s30, s30, 16")
        k("s_and_b32 s31, s20, 1")
        k("s_lshl_b32 s31, s31, 14")
        k("s_add_u32 s30, s30, s31")
    AS = [16, 24]
    HB = 32
    ACC = HB + 16 * DP
    useA = ACC + 128 > 256
    def acc(i, n=16):
        return ar(i, n) if useA else vr(ACC + i, n)
    def issue(j):
        return [f"s_add_u32 m0, s28, {j*2048}",
                f"buffer_load_dwordx4 v[{HB+16*j}:{HB+16*j+3}], v3, s[4:7], s29 offen",
                "buffer_load_dwordx4 v4, s[8:11], s30 offen lds",
                f"buffer_load_dwordx4 v[{HB+16*j+4}:{HB+16*j+7}], v3, s[4:7], s29 offen offset:1024",
                "buffer_load_dwordx4 v5, s[8:11], s30 offen offset:1024 lds",
                f"buffer_load_dwordx4 v[{HB+16*j+8}:{HB+16*j+11}], v3, s[4:7], s29 offen offset:2048",
                f"buffer_load_dwordx4 v[{HB+16*j+12}:{HB+16*j+15}], v3, s[4:7], s29 offen offset:3072",
                "s_add_u32 s29, s29, 16384",
                "s_add_u32 s30, s30, 131072"]
    def trreads(j, st):
        b = AS[st]
        return [f"ds_read_b64_tr_b16 v[{b}:{b+1}], v6 offset:{j*2048}",
                f"ds_read_b64_tr_b16 v[{b+2}:{b+3}], v6 offset:{j*2048+1024}",
                f"ds_read_b64_tr_b16 v[{b+4}:{b+5}], v7 offset:{j*2048}",
                f"ds_read_b64_tr_b16 v[{b+6}:{b+7}], v7 offset:{j*2048+1024}"]
    def mfmas(j, st):
        b = AS[st]
        r = []
        for rb in range(4):
            for db in range(2):
                c = 32 * rb + 16 * db
                r.append(f"v_mfma_f32_32x32x16_bf16 {acc(c)}, v[{b+4*db}:{b+4*db+3}], v[{HB+16*j+4*rb}:{HB+16*j+4*rb+3}], {acc(c)}")
        return r
    for j in range(DP - 1):
        for x in issue(j):
            k(x)
    for i in range(128):
        k(f"v_accvgpr_write_b32 a{i}, 0" if useA else f"v_mov_b32 v{ACC+i}, 0")
    k(f"s_waitcnt vmcnt({6*(DP-2)})")
    stamp(k, 1)
    for x in trreads(0, 0):
        k(x)
    k("s_mov_b32 s33, 0")
    k("L_g2_loop:")
    for j in range(DP):
        k(f"s_waitcnt vmcnt({6*(DP-3)})")
        for x in trreads((j + 1) % DP, (j + 1) & 1):
            k(x)
        k("s_waitcnt lgkmcnt(4)")
        fill = issue((j - 1) % DP)
        if j == DP - 1:
            fill = fill + ["s_add_u32 s33, s33, 1", f"s_cmp_lt_u32 s33, {56//DP}"]
        for x in interleave(mfmas(j, j & 1), fill, [2, 1, 1, 1, 1, 1, 2, 2]):
            k(x)
    k("s_cbranch_scc1 L_g2_loop")
    stamp(k, 2)
    k("s_waitcnt vmcnt(0) lgkmcnt(0)")
    k("s_barrier")
    k("s_nop 7")
    k("s_lshl_b32 s26, s23, 7")
    k("s_lshl_b32 s27, s20, 5")
    k("s_add_u32 s26, s26, s27")
    k("v_and_b32 v8, 31, v2")
    k("v_add_u32 v8, s26, v8")
    k("v_bfe_u32 v9, v8, 3, 6")
    k("v_and_b32 v10, 3, v8")
    k("v_lshl_add_u32 v9, v10, 6, v9")
    k("v_bfe_u32 v10, v8, 9, 1")
    k("v_lshl_add_u32 v9, v10, 8, v9")
    k("v_bfe_u32 v10, v8, 2, 1")
    k("v_lshl_add_u32 v9, v10, 9, v9")
    k("v_bfe_u32 v10, v8, 10, 1")
    k("v_lshl_add_u32 v9, v10, 10, v9")
    k("v_lshlrev_b32 v9, 11, v9")
    k("v_lshrrev_b32 v10, 5, v2")
    k("v_lshlrev_b32 v10, 3, v10")
    k("v_add_u32 v9, v9, v10")
    k("s_lshl_b32 s26, s24, 7")
    XB = HB
    for db in range(2):
        for q in range(4):
            o = db * 4 + q
            k(f"buffer_load_dwordx2 v[{XB+2*o}:{XB+2*o+1}], v9, s[12:15], s26 offen offset:{db*64+q*16}")
    k("s_lshl_b32 s27, s20, 13")
    k("v_add_u32 v10, s27, v3")
    k("v_add_u32 v11, 0x10000, v10")
    for rb in range(4):
        for i in range(8):
            base = "v10" if rb < 2 else "v11"
            k(f"ds_write_b128 {base}, {acc(32*rb+4*i, 4)} offset:{(rb&1)*32768+i*1024}")
    k("s_waitcnt lgkmcnt(0)")
    k("s_barrier")
    k("s_lshl_b32 s27, s20, 15")
    k("v_add_u32 v10, s27, v3")
    RB = HB + 16
    for src in range(4):
        for i in range(8):
            k(f"ds_read_b128 v[{RB+32*src+4*i}:{RB+32*src+4*i+3}], v10 offset:{src*8192+i*1024}")
    k("s_waitcnt vmcnt(0) lgkmcnt(0)")
    for i in range(32):
        k(f"v_add_f32 v{RB+i}, v{RB+i}, v{RB+32+i}")
        k(f"v_add_f32 v{RB+64+i}, v{RB+64+i}, v{RB+96+i}")
    for i in range(32):
        k(f"v_add_f32 v{RB+i}, v{RB+i}, v{RB+64+i}")
    for o in range(8):
        for h in range(2):
            k(f"v_lshlrev_b32 v12, 16, v{XB+2*o+h}")
            k(f"v_and_b32 v13, 0xffff0000, v{XB+2*o+h}")
            k(f"v_add_f32 v12, v12, v{RB+4*o+2*h}")
            k(f"v_add_f32 v13, v13, v{RB+4*o+2*h+1}")
            k(f"v_cvt_pk_bf16_f32 v{XB+2*o+h}, v12, v13")
        k(f"buffer_store_dwordx2 v[{XB+2*o}:{XB+2*o+1}], v9, s[16:19], s26 offen offset:{(o>>2)*64+(o&3)*16}")
    stamp(k, 3)
    if DIAG: k("s_waitcnt vmcnt(0)")
    stamp(k, 4)
    stamp_dump(k, 5, 2)
    k("L_g2_end:")
    if useA:
        nv = max(ACC, RB + 128)
        accum = (nv + 3) // 4 * 4
        return k, accum + 128, accum, 131072
    return k, 256, 256, 131072

def build(opts):
    global DIAG
    DIAG = opts.get("DIAG", 0)
    MF1 = opts.get("MF1", 32); NW1 = opts.get("NW1", 8)
    ln, lv, la, lnlds = gen_ln(MF1)
    g1, g1v, g1a, g1lds = gen_gemm1(opts.get("NS", 4), MF1, NW1)
    g2, g2v, g2a, g2lds = gen_gemm2(opts.get("DP", 8), MF1)
    hdr = open("cdna_kernels/%s.s.ref" % NAME).read().split("; Override launch")[0]
    out = hdr
    out += f"; @launch kernel=ln_kernel grid=(256,1,1) block=(512,1,1) lds={lnlds}\n"
    out += f"; @launch kernel=gemm1_kernel grid=(256,1,1) block=({64*NW1},1,1) lds={g1lds}\n"
    out += f"; @launch kernel=gemm2_kernel grid=(256,1,1) block=(256,1,1) lds={g2lds}\n"
    out += '.amdgcn_target "amdgcn-amd-amdhsa--gfx950"\n.text\n'
    out += ln.text(lv, la) + g1.text(g1v, g1a) + g2.text(g2v, g2a)
    out += '.section .rodata,"a"\n'
    out += ln.desc(lv, la) + g1.desc(g1v, g1a) + g2.desc(g2v, g2a)
    return out

if __name__ == "__main__":
    opts = {}
    outp = "cdna_kernels/%s.s" % NAME
    for a in sys.argv[1:]:
        if "=" in a:
            kk, vv = a.split("=")
            opts[kk] = int(vv)
        else:
            outp = a
    open(outp, "w").write(build(opts))
    print("wrote", outp)
```
